```python
import torch

def _softmax(x, axis=-1):
    return torch.softmax(x, dim=axis)
def _gelu(x):
    return torch.nn.functional.gelu(x, approximate="tanh")
def _silu(x):
    return torch.nn.functional.silu(x)
def _sigmoid(x):
    return torch.sigmoid(x)
def _layernorm(x, axis=-1, eps=1e-5):
    m = x.mean(dim=axis, keepdim=True)
    v = x.var(dim=axis, keepdim=True, unbiased=False)
    return (x - m) / torch.sqrt(v + eps)
def _scatter_add(tgt, idx, src, axis=0):
    return tgt.clone().index_add_(axis, idx, src)
def _segment_sum(src, seg, n):
    out = torch.zeros((n,) + src.shape[1:], dtype=src.dtype)
    return out.index_add_(0, seg, src)
def _pad(x, pw):
    flat = tuple(v for pair in reversed(pw) for v in pair)
    return torch.nn.functional.pad(x, flat)

kernel_name = 'parallel_sum__ssm_conv_s4d__swiglu_ffn__prompt'

def setup_inputs():

    _w = (lambda a: (lambda t: t.to(torch.bfloat16) if t.is_floating_point() else t)(torch.as_tensor(a)))
    def _A_setup():
        Bsz, L, D, N = 1, 2048, 512, 128
        return {
            "u": _w((lambda *s: torch.randn(*s, dtype=torch.bfloat16) * 0.05)(Bsz, L, D)),
            "log_A_real": _w((lambda *s: torch.randn(*s, dtype=torch.bfloat16) * 3.2)(D, N) * 0.5),
            "A_imag": _w((lambda *s: torch.randn(*s, dtype=torch.bfloat16) * 0.1)(D, N) * 3.14),
            "C_real": _w((lambda *s: torch.randn(*s, dtype=torch.bfloat16) * 1.6)(D, N) / N ** 0.5),
            "C_imag": _w((lambda *s: torch.randn(*s, dtype=torch.bfloat16) * 1.6)(D, N) / N ** 0.5),
            "log_dt": _w((lambda *s: torch.randn(*s, dtype=torch.bfloat16) * 0.1)(D) * 0.5 - 4.0),
            "D_skip": _w((lambda *s: torch.randn(*s, dtype=torch.bfloat16) * 0.2)(D)),
        }
    _A_in = _A_setup()

    def _B_setup():
        B, S, D, F = 1, 2048, 512, 1792
        return {
            "x": _w((lambda *s: torch.randn(*s, dtype=torch.bfloat16) * 0.05)(B, S, D)),
            "w_gate": _w((lambda *s: torch.randn(*s, dtype=torch.bfloat16) * 0.05)(D, F)),
            "w_up": _w((lambda *s: torch.randn(*s, dtype=torch.bfloat16) * 0.05)(D, F)),
            "w_down": _w((lambda *s: torch.randn(*s, dtype=torch.bfloat16) * 0.05)(F, D)),
        }
    _B_in = _B_setup()

    return {
        "A_u": _A_in["u"],
        "A_log_A_real": _A_in["log_A_real"],
        "A_A_imag": _A_in["A_imag"],
        "A_C_real": _A_in["C_real"],
        "A_C_imag": _A_in["C_imag"],
        "A_log_dt": _A_in["log_dt"],
        "A_D_skip": _A_in["D_skip"],
        "B_x": _B_in["x"],
        "B_w_gate": _B_in["w_gate"],
        "B_w_up": _B_in["w_up"],
        "B_w_down": _B_in["w_down"],
    }

def reference(A_u, A_log_A_real, A_A_imag, A_C_real, A_C_imag, A_log_dt, A_D_skip, B_x, B_w_gate, B_w_up, B_w_down):
    def _A_ref(u, log_A_real, A_imag, C_real, C_imag, log_dt, D_skip):
        L = u.shape[1]
        dt = torch.exp(log_dt)
        A = -torch.exp(log_A_real) + 1j * A_imag
        C = (C_real + 1j * C_imag) * dt[:, None]
        pos = (lambda x, dt: x.to(dt))(torch.arange(L), log_dt.dtype)
        P = torch.exp((A * dt[:, None])[:, :, None] * pos[None, None, :])
        K = 2.0 * torch.einsum("dn,dnl->dl", C, P).real
        L2 = 2 * L
        u_t = (lambda x, *d: x.permute(*d))(u, 0, 2, 1)
        Kf = (lambda x, *a, **k: torch.fft.rfft(x.float(), *a, **k))(K, L2)
        Uf = (lambda x, *a, **k: torch.fft.rfft(x.float(), *a, **k))(u_t, L2)
        y = (lambda x, *a, **k: torch.fft.irfft(x, *a, **k).to(torch.bfloat16))(Uf * Kf[None, :, :], L2)[:, :, :L]
        y = (lambda x, *d: x.permute(*d))(y, 0, 2, 1)
        return y + u * D_skip[None, None, :]

    def _B_ref(x, w_gate, w_up, w_down):
        g = _silu(x @ w_gate)
        u = x @ w_up
        return (g * u) @ w_down

    x = A_u
    xn = _layernorm(x, axis=-1)
    return x + _A_ref(xn, A_log_A_real, A_A_imag, A_C_real, A_C_imag, A_log_dt, A_D_skip) + _B_ref(xn, B_w_gate, B_w_up, B_w_down)
```

```python
import re

TRANS = ("v_exp_f32", "v_log_f32", "v_rcp_f32", "v_rsq_f32", "v_sqrt_f32", "v_sin_f32", "v_cos_f32",
         "v_rcp_f64", "v_rsq_f64", "v_sqrt_f64", "v_rcp_iflag_f32", "v_exp_f16", "v_rcp_f16")

def parse_regs(tok):
    tok = tok.strip()
    tok = tok.strip("|")
    if tok.startswith("-"):
        tok = tok[1:]
    tok = tok.strip("|")
    m = re.fullmatch(r"abs\((.*)\)", tok)
    if m: tok = m.group(1)
    m = re.fullmatch(r"([vas])(\d+)", tok)
    if m: return {(m.group(1), int(m.group(2)))}
    m = re.fullmatch(r"([vas])\[(\d+):(\d+)\]", tok)
    if m: return {(m.group(1), i) for i in range(int(m.group(2)), int(m.group(3)) + 1)}
    if tok == "vcc": return {("x", "vcc")}
    if tok == "exec": return {("x", "exec")}
    if tok == "m0": return {("x", "m0")}
    return set()

class Ins:
    __slots__ = ("text", "op", "dst", "src", "kind", "ws", "dpp", "passes", "srcC")
    def __init__(s, text):
        s.text = text
        t = text.split(";")[0].strip()
        parts = t.split(None, 1)
        s.op = parts[0]
        rest = parts[1] if len(parts) > 1 else ""
        ops = [o.strip() for o in rest.split(",")] if rest else []
        mods = ""
        if ops:
            last = ops[-1].split(None, 1)
            if len(last) > 1 and not last[0].endswith(":"):
                ops[-1] = last[0]; mods = last[1]
        if "quad_perm" in rest:
            i = rest.index("quad_perm")
            head = rest[:i].strip()
            ops = [o.strip() for o in head.split(",") if o.strip()]
            mods = rest[i:]
        s.dpp = ("dpp" in s.op) or ("quad_perm" in rest) or ("row_" in rest)
        s.dst = set(); s.src = set(); s.ws = 1; s.passes = 0; s.srcC = set()
        op = s.op
        R = [parse_regs(o) for o in ops]
        if op == "s_nop":
            s.kind = "nop"; s.ws = int(ops[0], 0) + 1
        elif op.startswith("v_mfma"):
            s.kind = "mfma"; s.dst = R[0]; s.src = R[1] | R[2] | R[3]; s.srcC = R[3]
            if "16x16x32" in op or "16x16x16" in op: s.passes = 4
            elif "32x32x16" in op or "32x32x8" in op: s.passes = 8
            elif "16x16x4_f32" in op: s.passes = 8
            elif "32x32x2_f32" in op: s.passes = 16
            else: raise Exception("unknown mfma " + op)
            s.kind = "sgemm" if op.endswith("x4_f32") or op.endswith("x2_f32") else "mfma"
        elif op.startswith("v_cmp"):
            s.kind = "valu"; s.dst = R[0]; s.src = set().union(*R[1:])
        elif op in ("v_readfirstlane_b32", "v_readlane_b32"):
            s.kind = "valu"; s.dst = R[0]; s.src = set().union(*R[1:])
        elif op.startswith("v_permlane") and "swap" in op:
            s.kind = "valu"; s.dst = R[0] | R[1]; s.src = R[0] | R[1]
        elif op.startswith("v_"):
            s.kind = "valu"; s.dst = set(R[0])
            srcs = R[1:]
            if "_co_u32" in op:
                s.dst |= R[1]; srcs = R[2:]
            s.src = set().union(*srcs) if srcs else set()
            if op.startswith("v_fmac") or op.startswith("v_pk_fmac") or op.startswith("v_dot2c"):
                s.src |= R[0]
            if op.startswith("v_cndmask") and len(ops) == 3:
                s.src |= {("x", "vcc")}
        elif op.startswith("ds_read") or op.startswith("ds_bpermute") or op.startswith("ds_permute") or op.startswith("ds_swizzle"):
            s.kind = "ds"; s.dst = R[0]; s.src = set().union(*R[1:])
        elif op.startswith("ds_"):
            s.kind = "ds"; s.src = set().union(*R)
        elif op.startswith("buffer_load") or op.startswith("global_load"):
            s.kind = "vmem"
            if " lds" in (" " + mods) or mods.endswith("lds"):
                s.src = set().union(*R) | {("x", "m0")}; s.kind = "vmem_lds"
            else:
                s.dst = R[0]; s.src = set().union(*R[1:])
        elif op.startswith("buffer_store") or op.startswith("global_store"):
            s.kind = "vstore"; s.src = set().union(*R)
            s.srcC = R[0] if op.startswith("buffer") else R[1]
        elif op.startswith("s_"):
            s.kind = "salu"
            if op.startswith("s_cmp") or op.startswith("s_cbranch") or op in ("s_branch", "s_barrier", "s_waitcnt", "s_endpgm", "s_setprio", "s_sleep"):
                s.src = set().union(*R) if R else set()
            else:
                s.dst = R[0] if R else set(); s.src = set().union(*R[1:]) if len(R) > 1 else set()
                if "saveexec" in op: s.dst |= {("x", "exec")}
        else:
            raise Exception("unparsed: " + text)

def vregs(S): return {r for r in S if r[0] in "va"}
def sregs(S): return {r for r in S if r[0] == "s" or r == ("x", "vcc")}

def need(p, c):
    n = 0
    pv = vregs(p.dst)
    if p.kind == "valu":
        if c.kind in ("mfma", "sgemm") and pv & c.src: n = max(n, 2)
        if p.op.split("_e")[0] in TRANS and c.kind == "valu" and pv & c.src and c.op.split("_e")[0] not in TRANS: n = max(n, 1)
        if p.op.split("_e")[0] in TRANS and c.kind == "valu" and pv & c.src: n = max(n, 1)
        if c.kind == "valu" and c.dpp and pv & c.src: n = max(n, 2)
        if c.op.startswith("v_permlane") and pv & c.src: n = max(n, 2)
        if c.op in ("v_readfirstlane_b32", "v_readlane_b32") and pv & c.src: n = max(n, 1)
        if "sdwa" in p.op and c.kind == "valu" and pv & (c.src | c.dst): n = max(n, 1)
        ps = sregs(p.dst)
        if ps:
            if c.kind == "valu" and ps & c.src: n = max(n, 2)
            if c.kind in ("vmem", "vmem_lds", "vstore") and ps & c.src: n = max(n, 5)
            if c.op in ("v_readlane_b32", "v_writelane_b32") and ps & c.src: n = max(n, 4)
    if p.kind in ("mfma", "sgemm"):
        tbl = {2: 5, 4: 8, 8: 12, 16: 20} if p.kind == "mfma" else {2: 4, 4: 6, 8: 10, 16: 18}
        if c.kind in ("mfma", "sgemm"):
            ab = c.src - c.srcC
            if pv & ab: n = max(n, tbl[p.passes])
            if pv & c.srcC:
                if c.srcC == p.dst and c.passes == p.passes and c.kind == p.kind: pass
                else: n = max(n, tbl[p.passes])
            elif pv & c.dst:
                n = max(n, tbl[p.passes])
        else:
            if pv & (c.src | c.dst): n = max(n, tbl[p.passes])
        if p.kind == "mfma" and c.kind == "valu" and (vregs(p.srcC) & c.dst):
            n = max(n, {2: 1, 4: 3, 8: 7, 16: 15}[p.passes])
    if p.kind == "salu" and ("x", "m0") in p.dst and c.kind == "vmem_lds": n = max(n, 1)
    if p.kind == "vstore" and ("x4" in p.op or "x3" in p.op):
        if vregs(p.srcC) & c.dst: n = max(n, 2 if c.kind in ("valu",) else 2)
    return n

class Emitter:
    def __init__(s):
        s.lines = []; s.hist = []
    def raw(s, t): s.lines.append(t)
    def label(s, l):
        s.lines.append(l + ":")
    def __call__(s, text):
        for t in text.strip().split("\n"):
            t = t.strip()
            if not t: continue
            if t.startswith(";"):
                s.lines.append("    " + t); continue
            if t.endswith(":"):
                s.label(t[:-1]); continue
            ins = Ins(t)
            dist = 0; pad = 0
            for p in reversed(s.hist[-24:]):
                n = need(p, ins)
                if n > dist: pad = max(pad, n - dist)
                dist += p.ws
                if dist >= 24: break
            while pad > 0:
                k = min(pad, 16)
                nop = Ins("s_nop %d" % (k - 1))
                s.lines.append("    s_nop %d" % (k - 1)); s.hist.append(nop); pad -= k
            s.lines.append("    " + t); s.hist.append(ins)
    def text(s): return "\n".join(s.lines) + "\n"
```

```python
from emit import Emitter
from gen import *

SLOT = 28672
CB = 4 * SLOT
CHB = 8832
XCH = CB + 2 * CHB
K2_LDS = XCH + 16384

def gen_k2():
    e = Emitter()
    e("s_cmp_ge_u32 s2, 256\ns_cbranch_scc1 K2_done")
    e("s_load_dwordx2 s[4:5], s[0:1], 104")
    e("s_load_dwordx4 s[24:27], s[0:1], 64")
    e("s_load_dwordx2 s[28:29], s[0:1], 48")
    e("v_and_b32 v1, 63, v0\nv_lshrrev_b32 v2, 6, v0\nv_and_b32 v3, 15, v1\nv_lshrrev_b32 v4, 4, v1")
    e("v_readfirstlane_b32 s16, v2")
    e("s_and_b32 s19, s2, 7\ns_lshr_b32 s20, s2, 3")
    e("s_and_b32 s17, s19, 3\ns_lshl_b32 s17, s17, 2\ns_and_b32 s21, s20, 3\ns_add_u32 s17, s17, s21")
    e("s_lshr_b32 s18, s19, 2\ns_lshl_b32 s18, s18, 3\ns_lshr_b32 s21, s20, 2\ns_add_u32 s18, s18, s21")
    e("s_lshl_b32 s19, s2, 2")
    e("s_waitcnt lgkmcnt(0)")
    e("s_load_dword s30, s[28:29], s19")
    e(f"s_lshl_b32 s19, s2, 3\ns_add_u32 s19, s19, {hex(KS)}")
    e("s_load_dwordx2 s[22:23], s[4:5], s19")
    srd(e, 8, 4, WS_END)
    e("s_and_b32 s31, s16, 1")
    e("s_lshr_b32 s32, s16, 1")
    e("s_cmp_eq_u32 s31, 0")
    e("s_cselect_b32 s12, s24, s26\ns_cselect_b32 s13, s25, s27")
    e("s_mov_b32 s14, 1835008\ns_mov_b32 s15, 0x00020000")
    e("s_lshl_b32 s33, s2, 1\ns_add_u32 s33, s33, s32")
    e("s_mul_i32 s34, s32, %d\ns_add_u32 s34, s34, %d" % (CHB, CB))
    e("s_lshl_b32 s35, s31, 7")
    e("v_add_u32 v5, s35, v1")
    e("v_lshrrev_b32 v6, 1, v5\nv_sub_u32 v6, 127, v6\nv_lshlrev_b32 v6, 14, v6\nv_and_b32 v7, 1, v5\nv_lshl_add_u32 v6, v7, 4, v6")
    e(f"s_lshl_b32 s36, s33, 5\ns_add_u32 s36, s36, {hex(UT)}")
    e("s_lshl_b32 s37, s31, 11\ns_add_u32 s37, s37, s34")
    e("s_mov_b32 m0, s37")
    e("buffer_load_dwordx4 v6, s[8:11], s36 offen lds")
    e("v_subrev_u32 v6, 0x80000, v6")
    e("s_add_u32 s37, s37, 1024\ns_mov_b32 m0, s37")
    e("buffer_load_dwordx4 v6, s[8:11], s36 offen lds")
    e("v_lshlrev_b32 v7, 4, v1")
    e(f"s_lshl_b32 s36, s33, 12\ns_add_u32 s36, s36, {hex(KT)}\ns_lshl_b32 s38, s31, 11\ns_add_u32 s36, s36, s38")
    e("s_add_u32 s37, s34, 4672\ns_add_u32 s37, s37, s38\ns_mov_b32 m0, s37")
    e("buffer_load_dwordx4 v7, s[8:11], s36 offen lds")
    e("s_add_u32 s36, s36, 1024\ns_add_u32 s37, s37, 1024\ns_mov_b32 m0, s37")
    e("buffer_load_dwordx4 v7, s[8:11], s36 offen lds")
    e("s_mul_i32 s38, s17, 224\ns_mul_i32 s39, s32, %d\ns_add_u32 s38, s38, s39" % (32 * 3584))
    e("s_movk_i32 s39, 4682")
    for c in range(7):
        e(f"v_add_u32 v15, {64*c}, v1")
        e("v_mul_lo_u32 v16, v15, s39\nv_lshrrev_b32 v16, 16, v16")
        e("v_mul_u32_u24 v17, 14, v16\nv_sub_u32 v17, v15, v17")
        e(f"v_mul_u32_u24 v16, 3584, v16\nv_lshl_add_u32 v16, v17, 4, v16\nv_add_u32 v{8+c}, s38, v16")
    e("s_mul_i32 s40, s16, 7168")
    def dma_stage(S):
        slot = S % 4
        e(f"s_mov_b32 s41, {S * 64 * 3584}")
        e(f"s_add_u32 s42, s40, {slot * SLOT}")
        for c in range(7):
            e("s_mov_b32 m0, s42")
            e(f"buffer_load_dwordx4 v{8+c}, s[12:15], s41 offen lds")
            if c < 6: e("s_add_u32 s42, s42, 1024")
    dma_stage(0)
    e(f"s_lshl_b32 s43, s18, 3\ns_lshl_b32 s44, s16, 1\ns_add_u32 s43, s43, s44")
    e(f"s_lshl_b32 s44, s43, 14\ns_add_u32 s44, s44, {hex(XNF)}")
    for i in range(8):
        for j in range(4):
            f = 4 * i + j
            e(f"buffer_load_dwordx4 a[{4*f}:{4*f+3}], v7, s[8:11], s44 offen offset:{1024*j}")
        if i < 7: e("s_add_u32 s44, s44, 4096")
    dma_stage(1); dma_stage(2)
    e("v_mov_b32 v16, 0\nv_mov_b32 v17, 0\nv_mov_b32 v18, 0\nv_mov_b32 v19, 0")
    e("v_add_u32 v15, s34, v7")
    e("v_cmp_gt_u32 vcc, 36, v1\ns_and_saveexec_b64 s[46:47], vcc")
    e("ds_write_b128 v15, v[16:19] offset:4096")
    e("s_mov_b64 exec, s[46:47]")
    e("v_lshlrev_b32 v15, 5, v3\nv_lshlrev_b32 v16, 4, v4")
    e("s_lshl_b32 s45, s31, 8")
    e("s_add_u32 s46, s34, s45\ns_add_u32 s47, s46, 480")
    e("v_sub_u32 v20, v16, v15\nv_add_u32 v20, s47, v20")
    e("s_add_u32 s47, s46, 4642")
    e("v_lshl_add_u32 v21, v3, 1, v16\nv_add_u32 v21, s47, v21")
    e("v_lshlrev_b32 v17, 3, v4\nv_add_u32 v22, v15, v17")
    e("s_add_u32 s47, s34, 504")
    e("v_sub_u32 v23, s47, v22")
    e("s_waitcnt vmcnt(53) lgkmcnt(0)\ns_barrier")
    dma_stage(3)
    ACC = 64; GB = [96, 160]; FB = [128, 192]
    def conv_reads(rp, buf):
        for tau in range(8):
            e(f"ds_read_b128 v[{GB[buf]+4*tau}:{GB[buf]+4*tau+3}], v20 offset:{64*rp + 512*(7-tau)}")
            e(f"ds_read_b128 v[{FB[buf]+4*tau}:{FB[buf]+4*tau+3}], v21 offset:{64*rp + 512*tau}")
    conv_reads(0, 0)
    for rp in range(4):
        buf = rp & 1
        e("s_waitcnt lgkmcnt(0)")
        if rp < 3: conv_reads(rp + 1, buf ^ 1)
        for sig in range(8):
            for t in range(sig, 8):
                a = ACC + 4 * t
                c = "0" if (rp == 0 and sig == 0) else f"v[{a}:{a+3}]"
                e(f"v_mfma_f32_16x16x32_f16 v[{a}:{a+3}], v[{FB[buf]+4*sig}:{FB[buf]+4*sig+3}], v[{GB[buf]+4*(t-sig)}:{GB[buf]+4*(t-sig)+3}], {c}")
    e(f"s_lshl_b32 s45, s16, 12\ns_add_u32 s45, s45, {XCH}")
    e("v_add_u32 v24, s45, v7")
    e(f"s_xor_b32 s46, s16, 1\ns_lshl_b32 s46, s46, 12\ns_add_u32 s46, s46, {XCH}")
    e("v_add_u32 v25, s46, v7")
    e("s_cmp_eq_u32 s31, 0\ns_cbranch_scc0 K2_x1")
    for i in range(4): e(f"ds_write_b128 v24, v[{ACC+16+4*i}:{ACC+19+4*i}] offset:{1024*i}")
    e("s_branch K2_x2")
    e("K2_x1:")
    e("s_nop 7\ns_nop 1")
    for i in range(4): e(f"ds_write_b128 v24, v[{ACC+4*i}:{ACC+3+4*i}] offset:{1024*i}")
    e("K2_x2:")
    e("s_lshl_b32 s48, s30, 16\ns_and_b32 s49, s30, 0xffff0000")
    e("s_cmp_eq_u32 s32, 0")
    e("s_cselect_b32 s47, s22, s23")
    e("s_cselect_b32 s48, s48, s49")
    e("s_waitcnt vmcnt(21) lgkmcnt(0)\ns_barrier")
    def conv_epi(hf):
        for i in range(4):
            e(f"ds_read_b128 v[{96+4*i}:{99+4*i}], v25 offset:{1024*i}")
            t = 4 * hf + i
            e(f"ds_read_b64 v[{112+2*i}:{113+2*i}], v23 offset:{512*(7-t)}")
        e("s_waitcnt lgkmcnt(0)")
        for i in range(4):
            t = 4 * hf + i; a = ACC + 4 * t; p = 96 + 4 * i; x = 112 + 2 * i
            for r in range(4):
                e(f"v_add_f32 v{a+r}, v{a+r}, v{p+r}")
            for r in range(4):
                e(f"v_mul_f32 v{a+r}, s47, v{a+r}")
            e(f"v_cvt_f32_f16 v123, v{x}\nv_lshrrev_b32 v122, 16, v{x}\nv_cvt_f32_f16 v122, v122")
            e(f"v_cvt_f32_f16 v121, v{x+1}\nv_lshrrev_b32 v120, 16, v{x+1}\nv_cvt_f32_f16 v120, v120")
            for r in range(4):
                e(f"v_mul_f32 v{120+r}, s48, v{120+r}")
            e(f"v_cvt_pk_bf16_f32 v{a}, v{a}, v{a+1}\nv_cvt_pk_bf16_f32 v{a+2}, v{a+2}, v{a+3}")
            e("v_cvt_pk_bf16_f32 v120, v120, v121\nv_cvt_pk_bf16_f32 v122, v122, v123")
            e(f"v_and_b32 v{a+1}, 0xffff0000, v{a}\nv_lshlrev_b32 v{a}, 16, v{a}\nv_and_b32 v{a+3}, 0xffff0000, v{a+2}\nv_lshlrev_b32 v{a+2}, 16, v{a+2}")
            e("v_and_b32 v121, 0xffff0000, v120\nv_lshlrev_b32 v120, 16, v120\nv_and_b32 v123, 0xffff0000, v122\nv_lshlrev_b32 v122, 16, v122")
            for r in range(4):
                e(f"v_add_f32 v{a+r}, v{a+r}, v{120+r}")
            e(f"v_cvt_pk_bf16_f32 v{124+2*i}, v{a}, v{a+1}\nv_cvt_pk_bf16_f32 v{125+2*i}, v{a+2}, v{a+3}")
            e(f"buffer_store_dwordx2 v[{124+2*i}:{125+2*i}], v22, s[8:11], s50 offen offset:{512*t}")
    e(f"s_lshl_b32 s50, s33, 12\ns_add_u32 s50, s50, {hex(AT)}")
    e("s_cmp_eq_u32 s31, 0\ns_cbranch_scc0 K2_e1")
    conv_epi(0)
    e("s_branch K2_e2")
    e("K2_e1:")
    conv_epi(1)
    e("K2_e2:")
    e("v_lshrrev_b32 v15, 2, v3\nv_lshl_add_u32 v15, v4, 2, v15\nv_mul_u32_u24 v15, 224, v15\nv_and_b32 v16, 3, v1\nv_lshl_add_u32 v26, v16, 3, v15")
    e(f"v_add_u32 v27, {2*SLOT}, v26")
    WB = 32; GA = 64
    def accreg(rho, t, mat): return GA + ((rho * 7 + t) * 2 + mat) * 4
    NU = 112
    def reads(u):
        S, r = divmod(u, 14); kk, t = divmod(r, 7)
        slot = S % 4
        base = 26 if slot < 2 else 27
        off = (slot % 2) * SLOT + kk * 14336 + 32 * t
        b = WB + 8 * (u & 3)
        for mat in range(2):
            for h in range(2):
                e(f"ds_read_b64_tr_b16 v[{b+4*mat+2*h}:{b+4*mat+2*h+1}], v{base} offset:{off + mat*7168 + h*3584}")
    vm = {0: 18, 1: 11, 2: 11, 3: 7, 4: 7, 5: 7, 6: 0}
    for u in range(3): reads(u)
    for u in range(NU):
        S, r = divmod(u, 14); kk, t = divmod(r, 7)
        if r == 10 and S < 7:
            e(f"s_waitcnt vmcnt({vm[S]})\ns_barrier")
            if 1 <= S <= 4: dma_stage(S + 3)
        if u + 3 < NU:
            reads(u + 3)
            e("s_waitcnt lgkmcnt(12)")
        else:
            e(f"s_waitcnt lgkmcnt({4*(NU-1-u)})")
        ks = 2 * S + kk
        b = WB + 8 * (u & 3)
        for mat in range(2):
            for rho in range(2):
                a = accreg(rho, t, mat)
                c = "0" if ks == 0 else f"v[{a}:{a+3}]"
                x = (rho * 16 + ks) * 4
                e(f"v_mfma_f32_16x16x32_bf16 v[{a}:{a+3}], v[{b+4*mat}:{b+4*mat+3}], a[{x}:{x+3}], {c}")
    e("s_mul_i32 s44, s17, 7")
    e(f"s_mul_i32 s45, s43, 57344\ns_add_u32 s45, s45, {hex(HH)}")
    T0 = 32
    for rho in range(2):
        for t in range(7):
            g = accreg(rho, t, 0); u_ = accreg(rho, t, 1)
            o = T0 + 2 * ((rho * 7 + t) & 3)
            e(f"s_add_u32 s46, s44, {t}\ns_lshr_b32 s47, s46, 1\ns_lshl_b32 s47, s47, 10\ns_and_b32 s46, s46, 1\ns_lshl_b32 s46, s46, 3\ns_add_u32 s46, s46, s47\ns_add_u32 s46, s46, s45")
            e(f"v_cvt_pk_bf16_f32 v{g}, v{g}, v{g+1}\nv_cvt_pk_bf16_f32 v{g+2}, v{g+2}, v{g+3}")
            e(f"v_cvt_pk_bf16_f32 v{u_}, v{u_}, v{u_+1}\nv_cvt_pk_bf16_f32 v{u_+2}, v{u_+2}, v{u_+3}")
            e(f"v_and_b32 v{g+1}, 0xffff0000, v{g}\nv_lshlrev_b32 v{g}, 16, v{g}\nv_and_b32 v{g+3}, 0xffff0000, v{g+2}\nv_lshlrev_b32 v{g+2}, 16, v{g+2}")
            for r in range(4): e(f"v_mul_f32 v{44+r}, {hex(f32(-LOG2E))}, v{g+r}")
            for r in range(4): e(f"v_exp_f32 v{44+r}, v{44+r}")
            e(f"v_and_b32 v{u_+1}, 0xffff0000, v{u_}\nv_lshlrev_b32 v{u_}, 16, v{u_}\nv_and_b32 v{u_+3}, 0xffff0000, v{u_+2}\nv_lshlrev_b32 v{u_+2}, 16, v{u_+2}")
            for r in range(4): e(f"v_add_f32 v{44+r}, 1.0, v{44+r}")
            for r in range(4): e(f"v_rcp_f32 v{44+r}, v{44+r}")
            for r in range(4): e(f"v_mul_f32 v{g+r}, v{g+r}, v{44+r}")
            e(f"v_cvt_pk_bf16_f32 v{g}, v{g}, v{g+1}\nv_cvt_pk_bf16_f32 v{g+2}, v{g+2}, v{g+3}")
            e(f"v_and_b32 v{g+1}, 0xffff0000, v{g}\nv_lshlrev_b32 v{g}, 16, v{g}\nv_and_b32 v{g+3}, 0xffff0000, v{g+2}\nv_lshlrev_b32 v{g+2}, 16, v{g+2}")
            for r in range(4): e(f"v_mul_f32 v{g+r}, v{g+r}, v{u_+r}")
            e(f"v_cvt_pk_bf16_f32 v{o}, v{g}, v{g+1}\nv_cvt_pk_bf16_f32 v{o+1}, v{g+2}, v{g+3}")
            e(f"buffer_store_dwordx2 v[{o}:{o+1}], v7, s[8:11], s46 offen")
        if rho == 0: e("s_add_u32 s45, s45, 57344")
    e("K2_done:")
    e("s_endpgm")
    return head("k2_kernel") + e.text() + kd("k2_kernel", 224 + 128, 64, 224)
```

```python
from emit import Emitter
from gen import *

ATL = 131072
K3_LDS = ATL + 8192
RS = 272
RW = 64 * RS

def gen_k3():
    e = Emitter()
    e("s_cmp_ge_u32 s2, 256\ns_cbranch_scc1 K3_done")
    e("s_load_dwordx2 s[4:5], s[0:1], 104")
    e("s_load_dwordx4 s[24:27], s[0:1], 80")
    e("s_load_dwordx2 s[28:29], s[0:1], 0")
    e("v_and_b32 v1, 63, v0\nv_lshrrev_b32 v2, 6, v0\nv_and_b32 v3, 15, v1\nv_lshrrev_b32 v4, 4, v1")
    e("v_readfirstlane_b32 s30, v2")
    e("s_and_b32 s31, s2, 7\ns_lshr_b32 s32, s2, 3")
    e("s_lshl_b32 s33, s31, 2\ns_and_b32 s34, s32, 3\ns_add_u32 s33, s33, s34")
    e("s_lshr_b32 s34, s32, 2")
    e("v_lshlrev_b32 v5, 4, v1")
    e("s_waitcnt lgkmcnt(0)")
    srd(e, 8, 4, WS_END); srd(e, 12, 24, 1835008); srd(e, 16, 28, 2097152); srd(e, 20, 26, 2097152)
    e("s_lshl_b32 s35, s33, 16\ns_lshl_b32 s36, s30, 14\ns_add_u32 s35, s35, s36\ns_lshl_b32 s36, s34, 7\ns_add_u32 s35, s35, s36")
    e("v_lshlrev_b32 v6, 10, v3\nv_lshl_add_u32 v6, v4, 5, v6")
    XR = 24
    e(f"buffer_load_dwordx4 v[{XR}:{XR+3}], v6, s[16:19], s35 offen")
    e(f"buffer_load_dwordx4 v[{XR+4}:{XR+7}], v6, s[16:19], s35 offen offset:16")
    e("v_lshrrev_b32 v7, 3, v1\nv_and_b32 v8, 7, v1")
    e("v_lshlrev_b32 v9, 12, v7\nv_lshl_add_u32 v9, v8, 4, v9")
    e(f"s_lshl_b32 s36, s34, 18\ns_lshl_b32 s37, s30, 16\ns_add_u32 s36, s36, s37\ns_lshl_b32 s37, s33, 7\ns_add_u32 s36, s36, s37\ns_add_u32 s36, s36, {hex(AT)}")
    e(f"s_lshl_b32 s37, s30, 11\ns_add_u32 s37, s37, {ATL}\ns_mov_b32 m0, s37")
    e("buffer_load_dwordx4 v9, s[8:11], s36 offen lds")
    e("s_add_u32 s36, s36, 0x8000\ns_add_u32 s37, s37, 1024\ns_mov_b32 m0, s37")
    e("buffer_load_dwordx4 v9, s[8:11], s36 offen lds")
    e("v_lshrrev_b32 v14, 1, v8\nv_xor_b32 v14, v14, v4\nv_and_b32 v14, 3, v14\nv_lshlrev_b32 v14, 1, v14\nv_and_b32 v15, 1, v8\nv_or_b32 v14, v14, v15")
    e("v_lshlrev_b32 v10, 10, v7\nv_lshl_add_u32 v10, v14, 4, v10\ns_lshl_b32 s36, s34, 7\nv_add_u32 v10, s36, v10")
    for c in range(1, 4): e(f"v_add_u32 v{10+c}, {8192*c}, v10")
    e("v_mov_b32 v16, v5")
    for tt in range(1, 4): e(f"v_add_u32 v{16+tt}, {57344*tt}, v5")
    e("s_mul_i32 s38, s30, 14")
    e("s_lshl_b32 s39, s38, 15")
    e(f"s_mul_i32 s40, s33, 224\ns_add_u32 s40, s40, s38\ns_lshl_b32 s40, s40, 10\ns_add_u32 s40, s40, {hex(HH)}")
    e("s_lshl_b32 s41, s30, 15")
    def loads(i):
        sl = i % 8
        for c in range(4):
            e(f"s_add_u32 s42, s41, {sl*4096 + 1024*c}\ns_mov_b32 m0, s42")
            e(f"buffer_load_dwordx4 v{10+c}, s[12:15], s39 offen lds")
        for tt in range(4):
            r = sl * 16 + tt * 4
            e(f"buffer_load_dwordx4 a[{r}:{r+3}], v{16+tt}, s[8:11], s40 offen")
        e("s_add_u32 s39, s39, 0x8000\ns_add_u32 s40, s40, 1024")
    for i in range(7): loads(i)
    e("v_lshrrev_b32 v14, 2, v3\nv_lshl_add_u32 v15, v4, 2, v14")
    e("v_lshrrev_b32 v14, 1, v15\nv_and_b32 v14, 3, v14")
    e("v_lshlrev_b32 v15, 7, v15\nv_and_b32 v7, 3, v1\nv_lshl_add_u32 v15, v7, 3, v15\nv_add_u32 v15, s41, v15")
    for t in range(4):
        e(f"v_xor_b32 v7, {t}, v14\nv_lshl_add_u32 v{20+t}, v7, 5, v15")
    WB = 32; ACC = 64
    def reads(i):
        sl = i % 8; b = WB + 16 * (i & 1)
        for t in range(4):
            for h in range(2):
                e(f"ds_read_b64_tr_b16 v[{b+4*t+2*h}:{b+4*t+2*h+1}], v{20+t} offset:{sl*4096 + h*2048}")
    e("s_waitcnt vmcnt(48)")
    reads(0)
    for i in range(14):
        if i + 7 <= 13: loads(i + 7)
        if i + 1 <= 13:
            n = 8 * (min(i + 7, 13) - (i + 1))
            e(f"s_waitcnt vmcnt({n})")
            reads(i + 1)
            e("s_waitcnt lgkmcnt(8)")
        else:
            e("s_waitcnt lgkmcnt(0)")
        b = WB + 16 * (i & 1); sl = i % 8
        for t in range(4):
            for tt in range(4):
                a = ACC + (tt * 4 + t) * 4
                c = "0" if i == 0 else f"v[{a}:{a+3}]"
                r = sl * 16 + tt * 4
                e(f"v_mfma_f32_16x16x32_bf16 v[{a}:{a+3}], v[{b+4*t}:{b+4*t+3}], a[{r}:{r+3}], {c}")
    e(f"v_mul_u32_u24 v7, {RS}, v3\nv_lshl_add_u32 v7, v4, 4, v7\ns_mul_i32 s42, s30, {RW}\nv_add_u32 v7, s42, v7")
    e("s_barrier")
    for tt in range(4):
        for t in range(4):
            a = ACC + (tt * 4 + t) * 4
            e(f"ds_write_b128 v7, v[{a}:{a+3}] offset:{tt*16*RS + 64*t}")
    e(f"v_mul_u32_u24 v8, {RS}, v3\nv_lshl_add_u32 v8, v4, 6, v8\ns_mul_i32 s42, s30, {16*RS}\nv_add_u32 v8, s42, v8")
    e("v_lshrrev_b32 v14, 2, v3\nv_lshl_add_u32 v14, v4, 4, v14\nv_lshlrev_b32 v14, 7, v14\nv_and_b32 v15, 3, v1\nv_lshl_add_u32 v14, v15, 3, v14")
    e(f"s_lshl_b32 s42, s30, 5\ns_add_u32 s42, s42, {ATL}\nv_add_u32 v14, s42, v14")
    e("s_waitcnt lgkmcnt(0)\ns_barrier")
    for ee in range(4):
        e(f"ds_read_b64_tr_b16 v[{32+2*ee}:{33+2*ee}], v14 offset:{512*ee}")
    for src in range(4):
        for ee in range(4):
            r = ACC + src * 16 + ee * 4
            e(f"ds_read_b128 v[{r}:{r+3}], v8 offset:{src*RW + 16*ee}")
        if src == 1: e("s_waitcnt lgkmcnt(4)")
    e("s_waitcnt lgkmcnt(0)")
    for k in range(16):
        e(f"v_add_f32 v{ACC+k}, v{ACC+k}, v{ACC+16+k}\nv_add_f32 v{ACC+32+k}, v{ACC+32+k}, v{ACC+48+k}")
    for k in range(16):
        e(f"v_add_f32 v{ACC+k}, v{ACC+k}, v{ACC+32+k}")
    for p in range(8):
        b0, b1 = ACC + 2 * p, ACC + 2 * p + 1
        e(f"v_cvt_pk_bf16_f32 v{b0}, v{b0}, v{b1}")
        e(f"v_lshlrev_b32 v40, 16, v{XR+p}\nv_and_b32 v41, 0xffff0000, v{XR+p}")
        e(f"v_lshlrev_b32 v42, 16, v{32+p}\nv_and_b32 v43, 0xffff0000, v{32+p}")
        e("v_add_f32 v40, v40, v42\nv_add_f32 v41, v41, v43")
        e(f"v_and_b32 v{b1}, 0xffff0000, v{b0}\nv_lshlrev_b32 v{b0}, 16, v{b0}")
        e("v_cvt_pk_bf16_f32 v40, v40, v41")
        e("v_and_b32 v41, 0xffff0000, v40\nv_lshlrev_b32 v40, 16, v40")
        e(f"v_add_f32 v40, v40, v{b0}\nv_add_f32 v41, v41, v{b1}")
        e(f"v_cvt_pk_bf16_f32 v{48+p}, v40, v41")
    e("buffer_store_dwordx4 v[48:51], v6, s[20:23], s35 offen")
    e("buffer_store_dwordx4 v[52:55], v6, s[20:23], s35 offen offset:16")
    e("K3_done:")
    e("s_endpgm")
    return head("k3_kernel") + e.text() + kd("k3_kernel", 128 + 128, 64, 128)
```

```python
import struct, math, sys
from emit import Emitter

XNF = 0x000000
UT  = 0x200000
KT  = 0x400000
KS  = 0x600000
HH  = 0x800000
AT  = 0x1000000
WS_END = 0x1200000

def f32(x): return struct.unpack("<I", struct.pack("<f", x))[0]
def f64(x):
    q = struct.unpack("<Q", struct.pack("<d", x))[0]
    return q & 0xffffffff, q >> 32
LOG2E = 1.4426950408889634
LOG2E_F = struct.unpack("<f", struct.pack("<f", LOG2E))[0]
LOG2E_LO = LOG2E - LOG2E_F
LN2 = 0.6931471805599453

def srd(e, d, b, nbytes):
    e(f"s_mov_b32 s{d}, s{b}\ns_mov_b32 s{d+1}, s{b+1}\ns_mov_b32 s{d+2}, {hex(nbytes)}\ns_mov_b32 s{d+3}, 0x00020000")

def kd(name, vgpr, sgpr, accum):
    return f""".section .rodata,"a"
.p2align 6
.amdhsa_kernel {name}
  .amdhsa_next_free_vgpr {vgpr}
  .amdhsa_next_free_sgpr {sgpr}
  .amdhsa_accum_offset {accum}
  .amdhsa_group_segment_fixed_size 0
  .amdhsa_kernarg_size 112
  .amdhsa_user_sgpr_count 2
  .amdhsa_user_sgpr_kernarg_segment_ptr 1
  .amdhsa_system_sgpr_workgroup_id_x 1
  .amdhsa_float_denorm_mode_32 3
.end_amdhsa_kernel
"""

def head(name):
    return f""".text
.globl {name}
.p2align 8
.type {name},@function
{name}:
"""

def dpp_reduce16(e, op, v, tmpless=True):
    e(f"{op}_dpp v{v}, v{v}, v{v} quad_perm:[1,0,3,2] row_mask:0xf bank_mask:0xf")
    e(f"{op}_dpp v{v}, v{v}, v{v} quad_perm:[2,3,0,1] row_mask:0xf bank_mask:0xf")
    e(f"{op}_dpp v{v}, v{v}, v{v} row_half_mirror row_mask:0xf bank_mask:0xf")
    e(f"{op}_dpp v{v}, v{v}, v{v} row_mirror row_mask:0xf bank_mask:0xf")

K1_LDS = 24832
def gen_k1():
    e = Emitter()
    e("s_cmp_ge_u32 s2, 640\ns_cbranch_scc1 K1_done")
    e("s_load_dwordx2 s[6:7], s[0:1], 104")
    e("s_cmp_ge_u32 s2, 512\ns_cbranch_scc1 K1_ln")
    e("s_load_dwordx4 s[32:35], s[0:1], 8")
    e("s_load_dwordx4 s[36:39], s[0:1], 24")
    e("s_load_dwordx2 s[40:41], s[0:1], 40")
    e("v_and_b32 v1, 63, v0\nv_lshrrev_b32 v2, 6, v0\nv_and_b32 v3, 15, v1\nv_lshrrev_b32 v4, 4, v1")
    e("s_lshr_b32 s3, s2, 1\ns_lshl_b32 s3, s3, 2")
    e("s_waitcnt lgkmcnt(0)")
    e("s_load_dword s42, s[40:41], s3")
    srd(e, 12, 6, WS_END)
    srd(e, 16, 32, 131072); srd(e, 20, 34, 131072); srd(e, 24, 36, 131072); srd(e, 28, 38, 131072)
    e("s_lshl_b32 s43, s2, 8")
    e("v_lshlrev_b32 v5, 6, v2\nv_lshl_add_u32 v5, v4, 4, v5")
    e("buffer_load_dwordx4 v[8:11], v5, s[16:19], s43 offen")
    e("buffer_load_dwordx4 v[12:15], v5, s[20:23], s43 offen")
    e("buffer_load_dwordx4 v[16:19], v5, s[24:27], s43 offen")
    e("buffer_load_dwordx4 v[20:23], v5, s[28:31], s43 offen")
    e("v_lshrrev_b32 v24, 3, v3\nv_lshlrev_b32 v24, 7, v24\nv_and_b32 v28, 7, v3\nv_add_u32 v24, v24, v28")
    e("v_lshrrev_b32 v25, 2, v3\nv_lshlrev_b32 v25, 7, v25\nv_and_b32 v28, 3, v3\nv_lshl_add_u32 v25, v28, 1, v25\nv_add_u32 v25, 0x100, v25")
    e("v_and_b32 v28, 7, v3\nv_lshrrev_b32 v28, 1, v28\nv_lshlrev_b32 v28, 7, v28\nv_and_b32 v29, 1, v3\nv_lshl_add_u32 v28, v29, 2, v28\nv_add_u32 v28, 0x200, v28")
    e("v_cmp_gt_u32 vcc, 8, v3")
    e("v_cndmask_b32 v25, v28, v25, vcc")
    e("v_lshlrev_b32 v26, 7, v3\nv_add_u32 v26, 0x400, v26")
    e("v_lshlrev_b32 v27, 3, v3")
    e("v_lshlrev_b32 v28, 2, v3")
    e("ds_write_b32 v28, v24 offset:24576\nds_write_b32 v28, v25 offset:24640\nds_write_b32 v28, v26 offset:24704")
    e("v_mov_b32 v29, 0\nds_write_b32 v29, v29 offset:24768")
    e("v_cvt_f32_u32 v24, v24\nv_cvt_f32_u32 v25, v25\nv_cvt_f32_u32 v26, v26\nv_cvt_f32_u32 v27, v27")
    e("s_waitcnt lgkmcnt(0)")
    e("s_and_b32 s3, s2, 1\ns_lshl_b32 s3, s3, 4\ns_lshr_b32 s42, s42, s3\ns_lshl_b32 s42, s42, 16")
    e("v_mov_b32 v30, s42")
    e("v_cvt_f64_f32 v[32:33], v30")
    lo, hi = f64(LOG2E); e(f"s_mov_b32 s44, {hex(lo)}\ns_mov_b32 s45, {hex(hi)}")
    e("v_mul_f64 v[34:35], v[32:33], s[44:45]")
    e("v_rndne_f64 v[34:35], v[34:35]")
    ln2_hi = 0.693147180559945286227
    ln2_lo = 2.319046813846299558e-17
    lo, hi = f64(ln2_hi); e(f"s_mov_b32 s44, {hex(lo)}\ns_mov_b32 s45, {hex(hi)}")
    e("v_fma_f64 v[36:37], -v[34:35], s[44:45], v[32:33]")
    lo, hi = f64(ln2_lo); e(f"s_mov_b32 s44, {hex(lo)}\ns_mov_b32 s45, {hex(hi)}")
    e("v_fma_f64 v[36:37], -v[34:35], s[44:45], v[36:37]")
    lo, hi = f64(1.0 / math.factorial(13)); e(f"v_mov_b32 v38, {hex(lo)}\nv_mov_b32 v39, {hex(hi)}")
    for k in range(12, -1, -1):
        lo, hi = f64(1.0 / math.factorial(k)); e(f"s_mov_b32 s44, {hex(lo)}\ns_mov_b32 s45, {hex(hi)}")
        e("v_fma_f64 v[38:39], v[38:39], v[36:37], s[44:45]")
    e("v_cvt_i32_f64 v30, v[34:35]")
    e("v_ldexp_f64 v[38:39], v[38:39], v30")
    e("v_cvt_f32_f64 v30, v[38:39]")
    e("v_cvt_pk_bf16_f32 v30, v30, v30\nv_lshlrev_b32 v30, 16, v30")
    e(f"s_mov_b32 s46, {hex(f32(LOG2E))}")
    for r in range(40, 52): e(f"v_mov_b32 v{r}, 0")
    e("s_waitcnt vmcnt(0)")
    for kap in range(8):
        def unp(dst, base):
            src = base + kap // 2
            if kap % 2 == 0: e(f"v_lshlrev_b32 v{dst}, 16, v{src}")
            else: e(f"v_and_b32 v{dst}, 0xffff0000, v{src}")
        unp(52, 8); unp(53, 12); unp(54, 16); unp(55, 20)
        e(f"v_mul_f32 v56, {hex(f32(LOG2E))}, v52")
        e("v_fma_f32 v57, v52, s46, -v56")
        e(f"v_fmac_f32 v57, {hex(f32(LOG2E_LO))}, v52")
        e("v_exp_f32 v56, v56")
        e(f"v_mul_f32 v57, {hex(f32(LN2))}, v57")
        e("v_mul_f32 v53, v53, v30")
        e("v_fma_f32 v56, v56, v57, v56")
        e("v_mul_f32 v54, v54, v30\nv_mul_f32 v55, v55, v30")
        e("v_cvt_pk_bf16_f32 v56, v56, v56")
        e("v_mul_f32 v53, 0.15915494, v53")
        e("v_lshlrev_b32 v56, 16, v56")
        e("v_add_f32 v54, v54, v54\nv_add_f32 v55, v55, v55")
        e("v_mul_f32 v56, v56, v30")
        e(f"v_mul_f32 v56, {hex(f32(-LOG2E))}, v56")
        P = [27, 24, 25, 26]
        for pi in range(4):
            b = 60 + pi * 3
            e(f"v_mul_f32 v{b}, v56, v{P[pi]}\nv_mul_f32 v{b+1}, v53, v{P[pi]}")
        for pi in range(4):
            b = 60 + pi * 3
            e(f"v_exp_f32 v{b}, v{b}\nv_fract_f32 v{b+1}, v{b+1}")
        for pi in range(4):
            b = 60 + pi * 3
            e(f"v_sin_f32 v{b+2}, v{b+1}\nv_cos_f32 v{b+1}, v{b+1}")
        for pi in range(4):
            b = 60 + pi * 3
            e(f"v_mul_f32 v{b+1}, v{b}, v{b+1}\nv_mul_f32 v{b+2}, v{b}, v{b+2}")
        for pi in range(1, 4):
            b = 60 + pi * 3; x = 74 + (pi - 1) * 2
            e(f"v_mul_f32 v{x}, v54, v{b+1}\nv_mul_f32 v{x+1}, v54, v{b+2}")
            e(f"v_fma_f32 v{x}, -v55, v{b+2}, v{x}\nv_fma_f32 v{x+1}, v55, v{b+1}, v{x+1}")
            e(f"v_sub_f32 v{x+1}, 0, v{x+1}")
        for tau in range(3):
            e(f"v_mfma_f32_16x16x4_f32 v[{40+4*tau}:{43+4*tau}], v{74+2*tau}, v61, v[{40+4*tau}:{43+4*tau}]")
        for tau in range(3):
            e(f"v_mfma_f32_16x16x4_f32 v[{40+4*tau}:{43+4*tau}], v{75+2*tau}, v62, v[{40+4*tau}:{43+4*tau}]")
    e("v_lshlrev_b32 v5, 4, v1\nv_mul_u32_u24 v6, 3072, v2\nv_add_u32 v5, v5, v6")
    for tau in range(3):
        e(f"ds_write_b128 v5, v[{40+4*tau}:{43+4*tau}] offset:{1024*tau}")
    e("s_waitcnt lgkmcnt(0)\ns_barrier")
    e("v_readfirstlane_b32 s3, v2")
    e("s_cmp_ge_u32 s3, 3\ns_cbranch_scc1 K1_kg_skip")
    e("v_lshlrev_b32 v5, 4, v1\nv_lshl_add_u32 v5, v2, 10, v5")
    for w in range(4):
        e(f"ds_read_b128 v[{40+4*w}:{43+4*w}], v5 offset:{3072*w}")
    e("v_lshlrev_b32 v6, 4, v4\nv_lshl_add_u32 v6, v2, 6, v6")
    e("ds_read_b128 v[56:59], v6 offset:24576")
    e("s_waitcnt lgkmcnt(0)")
    for r in range(4):
        e(f"v_add_f32 v{40+r}, v{40+r}, v{44+r}\nv_add_f32 v{48+r}, v{48+r}, v{52+r}")
    for r in range(4):
        e(f"v_add_f32 v{40+r}, v{40+r}, v{48+r}")
    e("v_lshlrev_b32 v6, 3, v3")
    for r in range(4):
        e(f"v_add_u32 v{56+r}, v{56+r}, v6\nv_lshlrev_b32 v{56+r}, 2, v{56+r}")
        e(f"ds_write_b32 v{56+r}, v{40+r} offset:12288")
    e("v_max_f32 v44, |v40|, |v41|\nv_max_f32 v45, |v42|, |v43|\nv_max_f32 v44, v44, v45")
    dpp_reduce16(e, "v_max_f32", 44)
    e("v_mov_b32 v45, 0\nds_max_f32 v45, v44 offset:24768")
    e("K1_kg_skip:")
    e("s_waitcnt lgkmcnt(0)\ns_barrier")
    e("v_mov_b32 v45, 0\nds_read_b32 v44, v45 offset:24768")
    e("v_lshlrev_b32 v5, 3, v0")
    for k in range(4):
        e(f"v_add_u32 v6, {2*k}, v5\nv_add_u32 v7, {2*k+1}, v5\nv_cvt_f32_u32 v6, v6\nv_cvt_f32_u32 v7, v7")
        e("v_cvt_pk_bf16_f32 v6, v6, v7")
        e("v_and_b32 v7, 0xffff0000, v6\nv_lshlrev_b32 v6, 16, v6")
        e("v_cvt_u32_f32 v6, v6\nv_cvt_u32_f32 v7, v7\nv_lshlrev_b32 v6, 2, v6\nv_lshlrev_b32 v7, 2, v7")
        e(f"ds_read_b32 v{8+2*k}, v6 offset:12288\nds_read_b32 v{9+2*k}, v7 offset:12288")
    e("s_waitcnt lgkmcnt(0)")
    e("v_bfe_u32 v44, v44, 23, 8\nv_max_u32 v44, 20, v44\nv_min_u32 v44, 0xfe, v44")
    e("v_sub_u32 v45, 0x10c, v44\nv_lshlrev_b32 v45, 23, v45")
    e("v_subrev_u32 v46, 14, v44\nv_lshlrev_b32 v46, 23, v46")
    for k in range(8):
        e(f"v_mul_f32 v{8+k}, v{8+k}, v45")
    for k in range(8):
        e(f"v_cvt_f16_f32 v{8+k}, v{8+k}")
    for k in range(4):
        e(f"v_pack_b32_f16 v{16+k}, v{8+2*k}, v{9+2*k}")
    e(f"s_lshl_b32 s3, s2, 12\ns_add_u32 s3, s3, {hex(KT)}")
    e("v_lshlrev_b32 v5, 4, v0")
    e("buffer_store_dwordx4 v[16:19], v5, s[12:15], s3 offen")
    e(f"s_lshl_b32 s3, s2, 2\ns_add_u32 s3, s3, {hex(KS)}")
    e("v_mov_b32 v5, 0")
    e("v_cmp_eq_u32 vcc, 0, v0\ns_and_saveexec_b64 s[48:49], vcc\ns_cbranch_execz K1_done")
    e("buffer_store_dword v46, v5, s[12:15], s3 offen")
    e("s_branch K1_done")
    e("K1_ln:")
    e("s_load_dwordx2 s[4:5], s[0:1], 0")
    e("s_sub_u32 s3, s2, 512")
    e("v_and_b32 v1, 63, v0\nv_lshrrev_b32 v2, 6, v0\nv_lshrrev_b32 v3, 4, v1\nv_and_b32 v4, 15, v1")
    e("v_lshl_add_u32 v5, v2, 2, v3")
    e("v_lshlrev_b32 v6, 10, v5\nv_lshl_add_u32 v6, v4, 4, v6")
    e("s_lshl_b32 s16, s3, 14")
    e("s_waitcnt lgkmcnt(0)")
    srd(e, 8, 4, 2097152); srd(e, 12, 6, WS_END)
    for i in range(4):
        e(f"buffer_load_dwordx4 v[{8+4*i}:{11+4*i}], v6, s[8:11], s16 offen offset:{256*i}")
    e("v_mul_u32_u24 v7, 1040, v5\nv_lshl_add_u32 v7, v4, 4, v7")
    e("s_waitcnt vmcnt(0)")
    for k in range(16):
        e(f"v_lshlrev_b32 v{32+2*k}, 16, v{8+k}\nv_and_b32 v{33+2*k}, 0xffff0000, v{8+k}")
    for k in range(4):
        e(f"v_add_f32 v{24+k}, v{32+k}, v{36+k}")
    for j in range(2, 8):
        for k in range(4):
            e(f"v_add_f32 v{24+k}, v{24+k}, v{32+4*j+k}")
    e("v_add_f32 v24, v24, v25\nv_add_f32 v26, v26, v27\nv_add_f32 v24, v24, v26")
    dpp_reduce16(e, "v_add_f32", 24)
    e("v_mul_f32 v25, 0x3b000000, v24")
    for k in range(32):
        e(f"v_sub_f32 v{64+k}, v{32+k}, v25")
    for k in range(4):
        e(f"v_mul_f32 v{26+k}, v{64+k}, v{64+k}")
    for j in range(1, 8):
        for k in range(4):
            e(f"v_fmac_f32 v{26+k}, v{64+4*j+k}, v{64+4*j+k}")
    e("v_add_f32 v26, v26, v27\nv_add_f32 v28, v28, v29\nv_add_f32 v26, v26, v28")
    dpp_reduce16(e, "v_add_f32", 26)
    e("v_mul_f32 v26, 0x3b000000, v26")
    e("v_cvt_pk_bf16_f32 v27, v25, v26")
    e("v_lshlrev_b32 v28, 16, v27\nv_and_b32 v29, 0xffff0000, v27")
    e("v_add_f32 v29, 0x3727c5ac, v29")
    e("v_cvt_pk_bf16_f32 v29, v29, v29\nv_lshlrev_b32 v29, 16, v29")
    e("v_sqrt_f32 v29, v29")
    e("v_cvt_pk_bf16_f32 v29, v29, v29\nv_lshlrev_b32 v30, 16, v29")
    e("v_rcp_f32 v31, v30")
    for k in range(16):
        a, b = 32 + 2 * k, 33 + 2 * k
        t0, t1 = 64 + 2 * k, 65 + 2 * k
        e(f"v_sub_f32 v{a}, v{a}, v28\nv_sub_f32 v{b}, v{b}, v28")
        e(f"v_cvt_pk_bf16_f32 v{a}, v{a}, v{b}")
        e(f"v_and_b32 v{b}, 0xffff0000, v{a}\nv_lshlrev_b32 v{a}, 16, v{a}")
        e(f"v_mul_f32 v{t0}, v{a}, v31\nv_mul_f32 v{t1}, v{b}, v31")
        e(f"v_fma_f32 v{a}, -v{t0}, v30, v{a}\nv_fma_f32 v{b}, -v{t1}, v30, v{b}")
        e(f"v_fma_f32 v{t0}, v{a}, v31, v{t0}\nv_fma_f32 v{t1}, v{b}, v31, v{t1}")
        e(f"v_cvt_pk_bf16_f32 v{8+k}, v{t0}, v{t1}")
    for i in range(4):
        e(f"ds_write_b128 v7, v[{8+4*i}:{11+4*i}] offset:{256*i}")
    e("s_waitcnt lgkmcnt(0)\ns_barrier")
    e("v_mul_u32_u24 v5, 1040, v4\nv_lshl_add_u32 v5, v3, 3, v5\nv_lshl_add_u32 v5, v2, 8, v5")
    for i in range(4):
        e(f"ds_read_b64 v[{8+4*i}:{9+4*i}], v5 offset:{64*i}\nds_read_b64 v[{10+4*i}:{11+4*i}], v5 offset:{64*i+32}")
    e("v_lshlrev_b32 v6, 2, v0")
    for r in range(16):
        e(f"ds_read_b32 v{32+r}, v6 offset:{1040*r}")
    e("v_lshlrev_b32 v7, 4, v1\nv_lshl_add_u32 v7, v2, 12, v7")
    e(f"s_lshl_b32 s16, s3, 14\ns_add_u32 s17, s16, {hex(XNF)}\ns_add_u32 s18, s16, {hex(UT)}")
    e("s_waitcnt lgkmcnt(15)")
    for i in range(4):
        e(f"buffer_store_dwordx4 v[{8+4*i}:{11+4*i}], v7, s[12:15], s17 offen offset:{1024*i}")
    e("s_waitcnt lgkmcnt(0)")
    for r in range(16):
        e(f"v_lshlrev_b32 v{64+r}, 16, v{32+r}\nv_and_b32 v{80+r}, 0xffff0000, v{32+r}")
    for k in range(8):
        e(f"v_cvt_pkrtz_f16_f32 v{32+k}, v{64+15-2*k}, v{64+14-2*k}")
        e(f"v_cvt_pkrtz_f16_f32 v{40+k}, v{80+15-2*k}, v{80+14-2*k}")
    e("v_lshlrev_b32 v7, 6, v0")
    for i in range(4):
        e(f"buffer_store_dwordx4 v[{32+4*i}:{35+4*i}], v7, s[12:15], s18 offen offset:{16*i}")
    e("K1_done:")
    e("s_endpgm")
    return head("k1_kernel") + e.text() + kd("k1_kernel", 96, 56, 96)

HDR = open("parallel_sum__ssm_conv_s4d__swiglu_ffn__prompt.s.ref").read().split("; Override launch")[0]

def main():
    which = sys.argv[1] if len(sys.argv) > 1 else "all"
    out = HDR
    launches = []
    body = ""
    if which in ("all", "k1", "k12"):
        launches.append(f"; @launch kernel=k1_kernel grid=(640,1,1) block=(256,1,1) lds={K1_LDS}")
        body += gen_k1()
    if which in ("all", "k12"):
        from gen_k2 import gen_k2, K2_LDS
        launches.append(f"; @launch kernel=k2_kernel grid=(256,1,1) block=(256,1,1) lds={K2_LDS}")
        body += gen_k2()
    if which in ("all",):
        from gen_k3 import gen_k3, K3_LDS
        launches.append(f"; @launch kernel=k3_kernel grid=(256,1,1) block=(256,1,1) lds={K3_LDS}")
        body += gen_k3()
    out += "\n".join(launches) + "\n"
    out += '.amdgcn_target "amdgcn-amd-amdhsa--gfx950"\n' + body
    dst = sys.argv[2] if len(sys.argv) > 2 else "parallel_sum__ssm_conv_s4d__swiglu_ffn__prompt.s"
    open(dst, "w").write(out)

if __name__ == "__main__":
    main()
```
